```python
import torch

def _softmax(x, axis=-1):
    return torch.softmax(x, dim=axis)

def _gelu(x):
    return torch.nn.functional.gelu(x, approximate='tanh')

def _silu(x):
    return torch.nn.functional.silu(x)

def _sigmoid(x):
    return torch.sigmoid(x)

def _layernorm(x, axis=-1, eps=1e-05):
    m = x.mean(dim=axis, keepdim=True)
    v = x.var(dim=axis, keepdim=True, unbiased=False)
    return (x - m) / torch.sqrt(v + eps)

def _scatter_add(tgt, idx, src, axis=0):
    return tgt.clone().index_add_(axis, idx, src)

def _segment_sum(src, seg, n):
    out = torch.zeros((n,) + src.shape[1:], dtype=src.dtype)
    return out.index_add_(0, seg, src)

def _pad(x, pw):
    flat = tuple((v for pair in reversed(pw) for v in pair))
    return torch.nn.functional.pad(x, flat)
kernel_name = 'sequential_preLN__memory_aug_recurrent_mem_tr__glu_gated_swiglu__prompt'

def setup_inputs():

    _w = lambda a: (lambda t: t.to(torch.bfloat16) if t.is_floating_point() else t)(torch.as_tensor(a))

    def _A_setup():
        B, S, Dm = (1, 2048, 640)
        H, Dh = (32, 128)
        M, seg = (8, 32)
        seg = min(seg, S)
        S = S // seg * seg
        return {'x': _w((lambda *s: torch.randn(*s, dtype=torch.bfloat16) * 0.05)(B, S, Dm)), 'mem0': _w((lambda *s: torch.randn(*s, dtype=torch.bfloat16) * 0.2)(B, M, Dm)), 'Wq': _w((lambda *s: torch.randn(*s, dtype=torch.bfloat16) * 1.6)(Dm, H, Dh) * Dm ** (-0.5)), 'Wk': _w((lambda *s: torch.randn(*s, dtype=torch.bfloat16) * 1.6)(Dm, H, Dh) * Dm ** (-0.5)), 'Wv': _w((lambda *s: torch.randn(*s, dtype=torch.bfloat16) * 0.2)(Dm, H, Dh) * Dm ** (-0.5)), 'Wo': _w((lambda *s: torch.randn(*s, dtype=torch.bfloat16) * 0.2)(H, Dh, Dm) * (H * Dh) ** (-0.5)), 'seg_len': seg}
    _A_in = _A_setup()

    def _B_setup():
        B, S, D, F = (1, 2048, 640, 1728)
        return {'x': _w((lambda *s: torch.randn(*s, dtype=torch.bfloat16) * 0.05)(B, S, D)), 'w1': _w((lambda *s: torch.randn(*s, dtype=torch.bfloat16) * 0.2)(D, F) * (2.0 / D) ** 0.5), 'w3': _w((lambda *s: torch.randn(*s, dtype=torch.bfloat16) * 0.2)(D, F) * (2.0 / D) ** 0.5), 'w2': _w((lambda *s: torch.randn(*s, dtype=torch.bfloat16) * 0.2)(F, D) * (2.0 / F) ** 0.5)}
    _B_in = _B_setup()
    return {'A_x': _A_in['x'], 'A_mem0': _A_in['mem0'], 'A_Wq': _A_in['Wq'], 'A_Wk': _A_in['Wk'], 'A_Wv': _A_in['Wv'], 'A_Wo': _A_in['Wo'], 'A_seg_len': _A_in['seg_len'], 'B_x': _B_in['x'], 'B_w1': _B_in['w1'], 'B_w3': _B_in['w3'], 'B_w2': _B_in['w2']}

def reference(A_x, A_mem0, A_Wq, A_Wk, A_Wv, A_Wo, A_seg_len, B_x, B_w1, B_w3, B_w2):

    def _A_ref(x, mem0, Wq, Wk, Wv, Wo, seg_len):
        B, S, Dm = x.shape
        H, Dh = (Wq.shape[1], Wq.shape[2])
        M = mem0.shape[1]
        scale = Dh ** (-0.5)
        n_seg = S // seg_len
        L = M + seg_len
        idx = torch.arange(L)
        mask = (idx[:, None] < M) | (idx[:, None] >= idx[None, :])
        mem = mem0
        outs = []
        for s in range(n_seg):
            xs = x[:, s * seg_len:(s + 1) * seg_len, :].clone()
            h = torch.concatenate([mem, xs], axis=1)
            q = torch.einsum('btd,dhe->bhte', h, Wq)
            k = torch.einsum('btd,dhe->bhte', h, Wk)
            v = torch.einsum('btd,dhe->bhte', h, Wv)
            scores = torch.einsum('bhqe,bhke->bhqk', q, k) * scale
            scores = torch.where(mask[None, None], scores, -1000000000.0)
            p = _softmax(scores, axis=-1)
            o = torch.einsum('bhqk,bhke->bhqe', p, v)
            o = torch.einsum('bhte,hed->btd', o, Wo)
            mem = o[:, :M, :].clone()
            outs.append(o[:, M:, :])
        return torch.concatenate(outs, axis=1)

    def _B_ref(x, w1, w3, w2):
        gate = torch.einsum('bsd,df->bsf', x, w1)
        up = torch.einsum('bsd,df->bsf', x, w3)
        h = _silu(gate) * up
        out = torch.einsum('bsf,fd->bsd', h, w2)
        return out
    x = A_x
    h = x + _A_ref(_layernorm(x, axis=-1), A_mem0, A_Wq, A_Wk, A_Wv, A_Wo, A_seg_len)
    h2 = h + _B_ref(_layernorm(h, axis=-1), B_w1, B_w3, B_w2)
    return h2
```

```python
NAME = "sequential_preLN__memory_aug_recurrent_mem_tr__glu_gated_swiglu__prompt"

def _al(x): return (x + 4095) // 4096 * 4096
WS = {}
_off = 0
def _add(name, size):
    global _off
    WS[name] = _off
    _off = _al(_off + size)
_add("WQK", 256*40*1024)
_add("WV", 128*40*1024)
_add("WO", 32*20*8*1024)
_add("W13", 108*40*1024)
_add("W2", 20*108*1024)
_add("XN", 64*40*1024)
_add("Q", 32*64*8*1024)
_add("K", 32*64*8*1024)
_add("UX", 64*32*20*2048)
_add("BM", 32*20*20*2048)
_add("MEMX", 65*10240)
_add("PX", 64*32*640)
_add("KM", 64*32*2048)
_add("UM", 64*32*640*16)
_add("H", 2048*640*2)
_add("ACT", 64*108*1024)
_add("STAMP", 65536)
WS_TOTAL = _off
assert WS_TOTAL <= 268435456, WS_TOTAL

class Asm:
    def __init__(self):
        self.lines = []
        self.n = 0
    def __call__(self, s):
        for l in s.strip("\n").split("\n"):
            self.lines.append("    " + l.strip())
    def label(self, l):
        self.lines.append(l + ":")
    def newlabel(self, p="L"):
        self.n += 1
        return f"{p}_{self.n}"
    def comment(self, s):
        self.lines.append("    ; " + s)
    def text(self):
        return "\n".join(self.lines) + "\n"

def srd(a, sreg, ptr_lo, nbytes):
    a(f"s_mov_b32 s{sreg}, s{ptr_lo}")
    a(f"s_and_b32 s{sreg+1}, s{ptr_lo+1}, 0xffff")
    a(f"s_mov_b32 s{sreg+2}, {hex(nbytes)}")
    a(f"s_mov_b32 s{sreg+3}, 0x00020000")

def kernel_begin(a, name):
    a.lines.append(f".globl {name}")
    a.lines.append(".p2align 8")
    a.lines.append(f".type {name},@function")
    a.label(name)

def descriptor(name, vgpr, sgpr=102, agpr=0):
    if agpr:
        acc_off = (vgpr + 3) // 4 * 4
        nfv = acc_off + agpr
    else:
        acc_off = (vgpr + 3) // 4 * 4
        nfv = vgpr
    return f"""
.p2align 6
.amdhsa_kernel {name}
  .amdhsa_next_free_vgpr {nfv}
  .amdhsa_next_free_sgpr {sgpr}
  .amdhsa_accum_offset {acc_off}
  .amdhsa_group_segment_fixed_size 0
  .amdhsa_kernarg_size 112
  .amdhsa_user_sgpr_count 2
  .amdhsa_user_sgpr_kernarg_segment_ptr 1
  .amdhsa_system_sgpr_workgroup_id_x 1
.end_amdhsa_kernel
"""

KA = dict(x=0, mem0=8, wq=16, wk=24, wv=32, wo=40, seg=48, bx=56, w1=64, w3=72, w2=80, out=88, dbg=96, ws=104)
```

```python
from common import *

def gen_prep(a, name):
    NU = [1280//2*2, ]
    kernel_begin(a, name)
    a("s_load_dwordx2 s[4:5], s[0:1], %d" % KA["ws"])
    a("v_lshrrev_b32 v1, 6, v0")
    a("v_and_b32 v2, 63, v0")
    a("v_readfirstlane_b32 s3, v1")
    a("s_lshl_b32 s6, s2, 2")
    a("s_add_u32 s6, s6, s3")
    segs = [
        ("wq", 640, 8192, 10, 640*8192),
        ("wk", 640, 8192, 10, 640*8192),
        ("wv", 640, 8192, 10, 640*8192),
        ("wo", 640, 1280, 2, 4096*1280),
        ("w1", 270, 3456, 10, 640*3456),
        ("w3", 270, 3456, 10, 640*3456),
        ("w2", 270, 1280, 27, 1728*1280),
    ]
    total = sum(s[1] for s in segs)
    NPW = total
    LN0 = 3372
    MISC0 = LN0 + 2048
    lab_ln = a.newlabel("LN"); lab_misc = a.newlabel("MISC"); lab_end = a.newlabel("END")
    a(f"s_cmp_ge_u32 s6, {MISC0}")
    a(f"s_cbranch_scc1 {lab_misc}")
    a(f"s_cmp_ge_u32 s6, {LN0}")
    a(f"s_cbranch_scc1 {lab_ln}")
    a(f"s_cmp_ge_u32 s6, {NPW}")
    a(f"s_cbranch_scc1 {lab_end}")
    lab_go = a.newlabel("PGO")
    base = 0
    for (nm, cnt, rs, ksg, sb) in segs:
        nxt = a.newlabel("PSEG")
        a(f"s_cmp_ge_u32 s6, {base+cnt}")
        a(f"s_cbranch_scc1 {nxt}")
        a(f"s_load_dwordx2 s[8:9], s[0:1], {KA[nm]}")
        a(f"s_sub_u32 s7, s6, {base}")
        a(f"s_mov_b32 s10, {rs}")
        a(f"s_mov_b32 s14, {sb}")
        magic = (1 << 32) // ksg + 1
        a(f"s_mul_hi_u32 s11, s7, {hex(magic)}")
        a(f"s_mul_i32 s12, s11, {ksg}")
        a("s_sub_u32 s12, s7, s12")
        if nm in ("wq", "wk", "wv"):
            b = WS["WQK"] + (128*40*1024 if nm == "wk" else 0) if nm != "wv" else WS["WV"]
            a("s_mul_i32 s13, s11, %d" % (2*40*1024))
            a("s_lshl_b32 s16, s12, 12")
            a("s_add_u32 s13, s13, s16")
            a(f"s_add_u32 s13, s13, {hex(b)}")
            a("s_mov_b32 s17, %d" % (40*1024))
            a("s_mul_i32 s15, s12, %d" % (64*rs))
            a("s_lshl_b32 s16, s11, 7")
            a("s_add_u32 s15, s15, s16")
        elif nm == "wo":
            a("s_mul_hi_u32 s18, s11, %s" % hex((1 << 32)//10 + 1))
            a("s_mul_i32 s16, s18, 10")
            a("s_sub_u32 s19, s11, s16")
            a("s_mul_i32 s13, s18, %d" % (20*8*1024))
            a("s_mul_i32 s16, s19, %d" % (2*8*1024))
            a("s_add_u32 s13, s13, s16")
            a("s_lshl_b32 s16, s12, 12")
            a("s_add_u32 s13, s13, s16")
            a(f"s_add_u32 s13, s13, {hex(WS['WO'])}")
            a("s_mov_b32 s17, %d" % (8*1024))
            a("s_lshl_b32 s15, s18, 1")
            a("s_add_u32 s15, s15, s12")
            a("s_mul_i32 s15, s15, %d" % (64*1280))
            a("s_lshl_b32 s16, s19, 7")
            a("s_add_u32 s15, s15, s16")
        elif nm in ("w1", "w3"):
            a("s_mul_i32 s13, s11, %d" % (4*40*1024))
            a("s_lshl_b32 s16, s12, 12")
            a("s_add_u32 s13, s13, s16")
            a(f"s_add_u32 s13, s13, {hex(WS['W13'] + (40*1024 if nm=='w3' else 0))}")
            a("s_mov_b32 s17, %d" % (2*40*1024))
            a("s_mul_i32 s15, s12, %d" % (64*rs))
            a("s_lshl_b32 s16, s11, 7")
            a("s_add_u32 s15, s15, s16")
        else:
            a("s_mul_i32 s13, s11, %d" % (2*108*1024))
            a("s_lshl_b32 s16, s12, 12")
            a("s_add_u32 s13, s13, s16")
            a(f"s_add_u32 s13, s13, {hex(WS['W2'])}")
            a("s_mov_b32 s17, %d" % (108*1024))
            a("s_mul_i32 s15, s12, %d" % (64*rs))
            a("s_lshl_b32 s16, s11, 7")
            a("s_add_u32 s15, s15, s16")
        a(f"s_branch {lab_go}")
        a.label(nxt)
        base += cnt
    a.label(lab_go)
    a("s_waitcnt lgkmcnt(0)")
    a("s_mov_b32 s20, s8\ns_and_b32 s21, s9, 0xffff\ns_mov_b32 s22, s14\ns_mov_b32 s23, 0x00020000")
    srd(a, 24, 4, 0x10000000)
    a("v_and_b32 v3, 31, v2")
    a("v_lshrrev_b32 v4, 5, v2")
    a("v_mul_lo_u32 v5, v4, s10")
    a("v_lshlrev_b32 v5, 2, v5")
    a("v_lshl_add_u32 v5, v3, 2, v5")
    a("v_lshrrev_b32 v6, 4, v3")
    a("v_mul_lo_u32 v6, v6, s17")
    a("v_lshlrev_b32 v7, 1, v3")
    a("v_and_b32 v7, 31, v7")
    a("v_lshl_add_u32 v7, v4, 5, v7")
    a("v_lshl_add_u32 v6, v7, 4, v6")
    rows = [0, 1, 2, 3, 8, 9, 10, 11]
    for ks in range(4):
        for i, r in enumerate(rows):
            a(f"s_mul_i32 s16, s10, {16*ks + r}")
            a("s_add_u32 s16, s16, s15")
            a(f"buffer_load_dword v{16+ks*8+i}, v5, s[20:23], s16 offen")
    a("s_mov_b32 s30, 0x05040100")
    a("s_mov_b32 s31, 0x07060302")
    for ks in range(4):
        a(f"s_waitcnt vmcnt({(3-ks)*8 + 2*ks})")
        b = 16 + ks*8
        for j in range(4):
            a(f"v_perm_b32 v{48+j}, v{b+2*j+1}, v{b+2*j}, s30")
            a(f"v_perm_b32 v{52+j}, v{b+2*j+1}, v{b+2*j}, s31")
        a(f"s_add_u32 s16, s13, {ks*1024}")
        a(f"buffer_store_dwordx4 v[48:51], v6, s[24:27], s16 offen")
        a(f"buffer_store_dwordx4 v[52:55], v6, s[24:27], s16 offen offset:16")
        a("s_nop 1")
    a(f"s_branch {lab_end}")

    a.label(lab_ln)
    a(f"s_load_dwordx2 s[8:9], s[0:1], {KA['x']}")
    a(f"s_sub_u32 s7, s6, {LN0}")
    a("s_waitcnt lgkmcnt(0)")
    srd(a, 20, 8, 2048*1280)
    srd(a, 24, 4, 0x10000000)
    gen_ln_row(a, src_srd=20, row_sreg=7, dst_base=WS["XN"], lane="v2")
    a(f"s_branch {lab_end}")

    a.label(lab_misc)
    a(f"s_sub_u32 s7, s6, {MISC0}")
    lab_sent = a.newlabel("SENT")
    a("s_cmp_ge_u32 s7, 10")
    a(f"s_cbranch_scc1 {lab_sent}")
    a(f"s_load_dwordx2 s[8:9], s[0:1], {KA['mem0']}")
    a("s_lshl_b32 s7, s7, 6")
    a("v_add_u32 v3, s7, v2")
    a("v_lshrrev_b32 v4, 3, v3")
    a("v_and_b32 v5, 7, v3")
    a("v_mul_u32_u24 v5, 1280, v5")
    a("v_lshrrev_b32 v6, 1, v4")
    a("v_lshl_add_u32 v5, v6, 5, v5")
    a("v_and_b32 v6, 1, v4")
    a("v_lshl_add_u32 v5, v6, 3, v5")
    a("s_waitcnt lgkmcnt(0)")
    srd(a, 20, 8, 8*1280)
    srd(a, 24, 4, 0x10000000)
    a("buffer_load_dwordx2 v[8:9], v5, s[20:23], 0 offen")
    a("buffer_load_dwordx2 v[10:11], v5, s[20:23], 0 offen offset:16")
    a("v_lshlrev_b32 v3, 4, v3")
    a(f"s_mov_b32 s16, {hex(WS['MEMX'])}")
    a("s_waitcnt vmcnt(0)")
    a("buffer_store_dwordx4 v[8:11], v3, s[24:27], s16 offen")
    a(f"s_branch {lab_end}")
    a.label(lab_sent)
    a("s_sub_u32 s7, s7, 10")
    a("s_cmp_ge_u32 s7, 480")
    a(f"s_cbranch_scc1 {lab_end}")
    a("s_lshl_b32 s16, s7, 12")
    a(f"s_add_u32 s17, s16, {hex(WS['MEMX'] + 10240)}")
    a(f"s_add_u32 s18, s16, {hex(WS['PX'] - 160*4096)}")
    a("s_cmp_ge_u32 s7, 160")
    a("s_cselect_b32 s16, s18, s17")
    a("s_waitcnt lgkmcnt(0)")
    srd(a, 24, 4, 0x10000000)
    a("v_mov_b32 v8, -1\nv_mov_b32 v9, -1\nv_mov_b32 v10, -1\nv_mov_b32 v11, -1")
    a("v_lshlrev_b32 v3, 4, v2")
    for i in range(4):
        a(f"buffer_store_dwordx4 v[8:11], v3, s[24:27], s16 offen offset:{i*1024}")
    a.label(lab_end)
    a("s_endpgm")
    nwaves = MISC0 + 10 + 480
    return (nwaves + 3) // 4

def wave_sum(a, v, tmp):
    for sh in (1, 2, 4, 8):
        a(f"s_nop 1")
        a(f"v_add_f32_dpp {v}, {v}, {v} row_ror:{sh} row_mask:0xf bank_mask:0xf")
    a("s_nop 1")
    a(f"v_readlane_b32 s40, {v}, 0\nv_readlane_b32 s41, {v}, 16\nv_readlane_b32 s42, {v}, 32\nv_readlane_b32 s43, {v}, 48")
    a("s_nop 1")
    a(f"v_mov_b32 {v}, s40\nv_add_f32 {v}, s41, {v}\nv_add_f32 {v}, s42, {v}\nv_add_f32 {v}, s43, {v}")

def bf16_round(a, v):
    a(f"v_cvt_pk_bf16_f32 {v}, {v}, {v}")
    a(f"v_lshlrev_b32 {v}, 16, {v}")

def gen_ln_row(a, src_srd, row_sreg, dst_base, lane):
    a(f"v_cmp_gt_u32 vcc, 40, {lane}")
    a(f"s_mul_i32 s44, s{row_sreg}, 1280")
    a(f"v_lshlrev_b32 v3, 5, {lane}")
    a("v_mov_b32 v8, 0\nv_mov_b32 v9, 0\nv_mov_b32 v10, 0\nv_mov_b32 v11, 0\nv_mov_b32 v12, 0\nv_mov_b32 v13, 0\nv_mov_b32 v14, 0\nv_mov_b32 v15, 0")
    a("s_and_saveexec_b64 s[46:47], vcc")
    a(f"buffer_load_dwordx4 v[8:11], v3, s[{src_srd}:{src_srd+3}], s44 offen")
    a(f"buffer_load_dwordx4 v[12:15], v3, s[{src_srd}:{src_srd+3}], s44 offen offset:16")
    a("s_mov_b64 exec, s[46:47]")
    a("s_waitcnt vmcnt(0)")
    for i in range(8):
        a(f"v_lshlrev_b32 v{16+2*i}, 16, v{8+i}")
        a(f"v_and_b32 v{17+2*i}, 0xffff0000, v{8+i}")
    a("v_add_f32 v32, v16, v17")
    for i in range(2, 16):
        a(f"v_add_f32 v32, v32, v{16+i}")
    wave_sum(a, "v32", None)
    a("v_mul_f32 v32, 0x3acccccd, v32")
    a("v_sub_f32 v33, v16, v32\nv_mul_f32 v34, v33, v33")
    for i in range(1, 16):
        a(f"v_sub_f32 v33, v{16+i}, v32\nv_fmac_f32 v34, v33, v33")
    a(f"v_cmp_gt_u32 vcc, 40, {lane}")
    a("s_nop 1")
    a("v_cndmask_b32 v34, 0, v34, vcc")
    wave_sum(a, "v34", None)
    a("v_mul_f32 v34, 0x3acccccd, v34")
    bf16_round(a, "v34")
    a("v_add_f32 v34, 0x3727c5ac, v34")
    bf16_round(a, "v34")
    a("v_sqrt_f32 v34, v34")
    a("s_nop 0")
    bf16_round(a, "v34")
    a("v_rcp_f32 v35, v34")
    bf16_round(a, "v32")
    for i in range(16):
        a(f"v_sub_f32 v{16+i}, v{16+i}, v32")
    for i in range(0, 16, 2):
        a(f"v_cvt_pk_bf16_f32 v36, v{16+i}, v{17+i}")
        a(f"v_lshlrev_b32 v{16+i}, 16, v36")
        a(f"v_and_b32 v{17+i}, 0xffff0000, v36")
    for i in range(16):
        a(f"v_mul_f32 v36, v{16+i}, v35")
        a(f"v_fma_f32 v37, -v36, v34, v{16+i}")
        a(f"v_fma_f32 v{16+i}, v37, v35, v36")
    order = [0, 1, 4, 5, 2, 3, 6, 7]
    for j, w in enumerate(order):
        a(f"v_cvt_pk_bf16_f32 v{40+j}, v{16+2*w}, v{17+2*w}")
    a(f"s_lshr_b32 s44, s{row_sreg}, 5")
    a("s_mul_i32 s44, s44, %d" % (40*1024))
    a(f"s_and_b32 s45, s{row_sreg}, 31")
    a("s_lshl_b32 s45, s45, 4")
    a("s_add_u32 s44, s44, s45")
    a(f"s_add_u32 s44, s44, {hex(dst_base)}")
    a(f"v_lshlrev_b32 v3, 10, {lane}")
    a(f"v_cmp_gt_u32 vcc, 40, {lane}")
    a("s_and_saveexec_b64 s[46:47], vcc")
    a("buffer_store_dwordx4 v[40:43], v3, s[24:27], s44 offen")
    a("buffer_store_dwordx4 v[44:47], v3, s[24:27], s44 offen offset:512")
    a("s_mov_b64 exec, s[46:47]")
```

```python
from common import *

def mfma32(a, d, A, B, c=None):
    c = d if c is None else c
    a(f"v_mfma_f32_32x32x16_bf16 {d}, {A}, {B}, {c}")

def gemm_core(a, nst, sA, sB, NI=4, NJ=4, KSA=40, KSB=40, wsrd=24):
    T = 2*NI + 2*NJ
    n = T // 2
    STG = T*2048
    for i in range(NI*NJ*16):
        a(f"v_accvgpr_write_b32 a{i}, 0")
    a("s_lshr_b32 s50, s3, 1\ns_and_b32 s51, s3, 1")
    a(f"s_mul_i32 s50, s50, {NI*2048}\ns_mul_i32 s51, s51, {NJ*2048}\ns_add_u32 s51, s51, {2*NI*2048}")
    a("v_add_u32 v15, s51, v16\nv_add_u32 v14, s50, v16")
    a(f"s_mul_i32 s52, s3, {n}")
    for k in range(n):
        a(f"s_add_u32 s54, s52, {k}")
        a("s_lshr_b32 s55, s54, 1\ns_and_b32 s56, s54, 1\ns_lshl_b32 s56, s56, 10")
        a(f"s_mul_i32 s57, s55, {KSA*1024}\ns_add_u32 s57, s57, s{sA}")
        a(f"s_sub_u32 s58, s55, {2*NI}\ns_mul_i32 s58, s58, {KSB*1024}\ns_add_u32 s58, s58, s{sB}")
        a(f"s_cmp_lt_u32 s55, {2*NI}\ns_cselect_b32 s57, s57, s58")
        a(f"s_add_u32 s{80+k}, s57, s56")
    a("s_lshl_b32 s52, s52, 10")
    a("s_mov_b32 s53, 0")
    def issue():
        a("s_add_u32 s54, s53, s52")
        for k in range(n):
            a("s_mov_b32 m0, s54")
            a(f"s_add_u32 s54, s54, 1024")
            a(f"buffer_load_dwordx4 v16, s[{wsrd}:{wsrd+3}], s{80+k} offen lds")
            a(f"s_add_u32 s{80+k}, s{80+k}, 2048")
        a(f"s_add_u32 s53, s53, {STG}\ns_cmp_ge_u32 s53, {4*STG}\ns_cselect_b32 s53, 0, s53")
    def reads(setb, k):
        for i in range(NI):
            a(f"ds_read_b128 v[{setb+4*i}:{setb+4*i+3}], v14 offset:{i*2048+k*1024}")
        for j in range(NJ):
            a(f"ds_read_b128 v[{setb+16+4*j}:{setb+16+4*j+3}], v15 offset:{j*2048+k*1024}")
    def mm(setb):
        for i in range(NI):
            for j in range(NJ):
                d = f"a[{(i*NJ+j)*16}:{(i*NJ+j)*16+15}]"
                mfma32(a, d, f"v[{setb+4*i}:{setb+4*i+3}]", f"v[{setb+16+4*j}:{setb+16+4*j+3}]")
    issue(); issue(); issue()
    a(f"s_waitcnt vmcnt({2*n})\ns_barrier")
    reads(64, 0)
    a("s_mov_b32 s59, 0\ns_mov_b32 s49, 0"); a(f"s_mov_b32 s47, {STG}")
    L = a.newlabel("GL"); L2 = a.newlabel("GL"); L3 = a.newlabel("GL")
    a.label(L)
    reads(96, 1)
    a(f"s_waitcnt lgkmcnt({NI+NJ})")
    mm(64)
    a(f"s_add_u32 s49, s49, {STG}\ns_cmp_ge_u32 s49, {4*STG}\ns_cselect_b32 s48, {-3*STG & 0xffffffff}, s47\ns_cselect_b32 s49, 0, s49")
    a("v_add_u32 v14, s48, v14\nv_add_u32 v15, s48, v15")
    a(f"s_cmp_ge_u32 s59, {nst-2}")
    a(f"s_cbranch_scc1 {L2}")
    a(f"s_waitcnt vmcnt({n})\ns_barrier")
    a(f"s_cmp_ge_u32 s59, {nst-3}")
    a(f"s_cbranch_scc1 {L3}")
    issue()
    a(f"s_branch {L3}")
    a.label(L2)
    a("s_waitcnt vmcnt(0)\ns_barrier")
    a.label(L3)
    a("s_waitcnt lgkmcnt(0)")
    reads(64, 0)
    mm(96)
    a("s_add_u32 s59, s59, 1")
    a(f"s_cmp_lt_u32 s59, {nst}")
    a(f"s_cbranch_scc1 {L}")
    a("s_waitcnt lgkmcnt(0)")
    a("s_nop 15")
    return 4*STG

def cvt_chunk(a, dst, src_a, tmp):
    for r in range(8):
        a(f"v_accvgpr_read_b32 v{tmp+r}, a{src_a+r}")
    for r in range(4):
        a(f"v_cvt_pk_bf16_f32 v{dst+r}, v{tmp+2*r}, v{tmp+2*r+1}")

def stage2(a, nct, sW, sOut, jstride, ctstride, nj=4, wsrd=24):
    def loadB(buf, ct):
        for es in range(8):
            off = es*1024
            if off < 4096:
                a(f"buffer_load_dwordx4 a[{128+buf*32+es*4}:{128+buf*32+es*4+3}], v16, s[{wsrd}:{wsrd+3}], s{sW} offen offset:{off}")
            else:
                a(f"buffer_load_dwordx4 a[{128+buf*32+es*4}:{128+buf*32+es*4+3}], v17, s[{wsrd}:{wsrd+3}], s{sW} offen offset:{off-4096}")
        a(f"s_add_u32 s{sW}, s{sW}, 8192")
    a("v_add_u32 v17, 0x1000, v16")
    def epi(buf):
        ins = []
        sub = Asm()
        for j in range(nj):
            for ap in range(2):
                t = 32 + ((j*2+ap) % 2) * 12
                cvt_chunk(sub, t+8, buf*64 + j*16 + ap*8, t)
                sub(f"s_add_u32 s56, s{sOut}, {j*jstride + ap*1024}")
                sub(f"buffer_store_dwordx4 v[{t+8}:{t+11}], v16, s[{wsrd}:{wsrd+3}], s56 offen")
        sub(f"s_add_u32 s{sOut}, s{sOut}, {ctstride}")
        return sub.lines
    loadB(0, 0)
    pend = []
    nstores_after = 0
    for ct in range(nct):
        buf = ct % 2
        if ct + 1 < nct:
            loadB(1-buf, ct+1)
        a(f"s_waitcnt vmcnt({8 if ct+1 < nct else 0})")
        mm = []
        for es in range(8):
            for j in range(nj):
                d = f"a[{buf*64+j*16}:{buf*64+j*16+15}]"
                c = d if es > 0 else "0"
                mm.append(f"    v_mfma_f32_32x32x16_bf16 {d}, v[{128+(j*8+es)*4}:{128+(j*8+es)*4+3}], a[{128+buf*32+es*4}:{128+buf*32+es*4+3}], {c}")
        k = 0
        per = (len(pend) + len(mm) - 1) // len(mm) if pend else 0
        for m in mm:
            a.lines.append(m)
            for _ in range(per):
                if k < len(pend):
                    a.lines.append(pend[k]); k += 1
        while k < len(pend):
            a.lines.append(pend[k]); k += 1
        pend = epi(buf)
        if ct + 1 < nct:
            pend = ["    s_nop 15"] + pend[:]
    a("s_nop 15")
    a.lines.extend(pend)

def gen_k1(a, name):
    kernel_begin(a, name)
    a("s_load_dwordx2 s[4:5], s[0:1], %d" % KA["ws"])
    a("s_load_dwordx2 s[8:9], s[0:1], %d" % KA["wv"])
    a("v_lshrrev_b32 v1, 6, v0")
    a("v_and_b32 v2, 63, v0")
    a("v_readfirstlane_b32 s3, v1")
    a("v_lshlrev_b32 v16, 4, v2")
    import os
    OFF = int(os.environ.get("G1_OFF", "0")); CNT = int(os.environ.get("G1_CNT", "544"))
    if OFF or CNT != 544:
        a(f"s_cmp_ge_u32 s2, {CNT}\ns_cbranch_scc1 G1_SKIP\ns_add_u32 s2, s2, {OFF}")
    LQK = a.newlabel("QK"); LG3 = a.newlabel("G3"); LEND = a.newlabel("END"); LCORE=a.newlabel("CORE"); LQKE=a.newlabel("QKE")
    a("s_cmp_ge_u32 s2, 544")
    a(f"s_cbranch_scc1 {LEND}")
    a("s_waitcnt lgkmcnt(0)")
    srd(a, 24, 4, 0x10000000)
    a("s_cmp_ge_u32 s2, 384")
    a(f"s_cbranch_scc1 {LG3}")
    a("s_sub_u32 s6, s2, 128")
    a("s_cmp_lt_u32 s2, 128")
    a("s_cselect_b32 s6, s2, s6")
    a(f"s_mov_b32 s7, {hex(WS['WQK'])}\ns_mov_b32 s10, {hex(WS['WV'])}")
    a("s_cselect_b32 s7, s10, s7")
    a("s_lshr_b32 s11, s6, 3\ns_and_b32 s12, s6, 7")
    a("s_mul_i32 s13, s11, %d" % (8*40960))
    a("s_add_u32 s60, s7, s13")
    a("s_mul_i32 s13, s12, %d" % (8*40960))
    a(f"s_add_u32 s61, s13, {hex(WS['XN'])}")
    gemm_core(a, 20, 60, 61)
    a("s_cmp_ge_u32 s2, 128")
    a(f"s_cbranch_scc1 {LQKE}")
    for i in range(4):
        for j in range(4):
            for ap in range(2):
                t = 32 + ((j*2+ap) % 2) * 8
                cvt_chunk(a, 128 + (j*8 + 2*i + ap)*4, (i*4+j)*16 + ap*8, t)
    a("s_lshr_b32 s14, s3, 1\ns_and_b32 s15, s3, 1")
    a("s_lshl_b32 s16, s11, 1\ns_add_u32 s16, s16, s14")
    a("s_lshl_b32 s17, s12, 3\ns_lshl_b32 s15, s15, 2\ns_add_u32 s17, s17, s15")
    a("s_mul_i32 s62, s16, %d" % (20*8192))
    a(f"s_add_u32 s62, s62, {hex(WS['WO'])}")
    a("s_mul_i32 s63, s17, %d" % (32*20*2048))
    a("s_mul_i32 s13, s16, %d" % (20*2048))
    a("s_add_u32 s63, s63, s13")
    a(f"s_add_u32 s63, s63, {hex(WS['UX'])}")
    stage2(a, 20, 62, 63, 32*20*2048, 2048)
    a(f"s_branch {LEND}")
    a.label(LQKE)
    a("s_lshr_b32 s14, s3, 1\ns_and_b32 s15, s3, 1")
    a("s_lshl_b32 s16, s11, 1\ns_add_u32 s16, s16, s14")
    a("s_lshl_b32 s17, s12, 3\ns_lshl_b32 s15, s15, 2\ns_add_u32 s17, s17, s15")
    assert WS["K"] == WS["Q"] + 32*64*8*1024
    a("s_lshl_b32 s63, s16, 19")
    a("s_lshl_b32 s13, s17, 13")
    a("s_add_u32 s63, s63, s13")
    a(f"s_add_u32 s63, s63, {hex(WS['Q'])}")
    for j in range(4):
        for i in range(4):
            for ap in range(2):
                t = 32 + ((i*2+ap) % 2) * 12
                cvt_chunk(a, t+8, (i*4+j)*16 + ap*8, t)
                a(f"s_add_u32 s56, s63, {j*8192 + (2*i+ap)*1024}")
                a(f"buffer_store_dwordx4 v[{t+8}:{t+11}], v16, s[24:27], s56 offen")
    a(f"s_branch {LEND}")
    a.label(LG3)
    a("s_sub_u32 s6, s2, 384")
    a("s_mul_hi_u32 s16, s6, %s" % hex((1 << 32)//5 + 1))
    a("s_mul_i32 s13, s16, 5\ns_sub_u32 s17, s6, s13")
    srd(a, 28, 8, 640*8192)
    a("v_and_b32 v3, 31, v2\nv_lshrrev_b32 v4, 5, v2")
    a("v_lshlrev_b32 v3, 13, v3\nv_lshl_add_u32 v3, v4, 3, v3")
    a("s_lshl_b32 s13, s17, 20\ns_lshl_b32 s14, s16, 8\ns_add_u32 s13, s13, s14")
    for j in range(4):
        a(f"s_add_u32 s14, s13, {j*32*8192}")
        for es in range(8):
            r = 128 + (j*8+es)*4
            a(f"buffer_load_dwordx2 v[{r}:{r+1}], v3, s[28:31], s14 offen offset:{es*32}")
            a(f"buffer_load_dwordx2 v[{r+2}:{r+3}], v3, s[28:31], s14 offen offset:{es*32+16}")
    a("s_mul_i32 s18, s3, 5")
    a("s_mul_i32 s62, s16, 20\ns_add_u32 s62, s62, s18")
    a("s_mul_i32 s63, s62, %d" % (20*2048))
    a("s_lshl_b32 s62, s62, 13")
    a(f"s_add_u32 s62, s62, {hex(WS['WO'])}")
    a("s_lshl_b32 s13, s17, 13")
    a("s_add_u32 s63, s63, s13")
    a(f"s_add_u32 s63, s63, {hex(WS['BM'])}")
    a("s_waitcnt vmcnt(0)")
    stage2(a, 5, 62, 63, 2048, 20*2048)
    a.label(LEND)
    a.label("G1_SKIP")
    a("s_endpgm")
    return CNT
```

```python
from common import *
NSTEP = 64
ENDL = [None]

def wreg(idx):
    if idx < 64: return f"a[{idx*4}:{idx*4+3}]"
    r = 192 + (idx-64)*4
    return f"v[{r}:{r+3}]"

def poll_mem(a, stamp=None):
    L = a.newlabel("PM")
    a.label(L)
    a("buffer_load_dwordx4 v[32:35], v10, s[24:27], s20 offen sc1")
    a("buffer_load_dwordx4 v[36:39], v11, s[24:27], s20 offen sc1")
    a("buffer_load_dwordx4 v[40:43], v12, s[24:27], s20 offen sc1")
    a("s_waitcnt vmcnt(0)")
    a("v_max3_u32 v44, v32, v33, v34\nv_max3_u32 v45, v35, v36, v37\nv_max3_u32 v46, v38, v39, v40\nv_max3_u32 v47, v41, v42, v43")
    a("v_max3_u32 v44, v44, v45, v46\nv_max_u32 v44, v44, v47")
    a("v_cmp_eq_u32 vcc, -1, v44")
    a(f"s_add_u32 s36, s36, 1\ns_cmp_gt_u32 s36, 0x400000\ns_cbranch_scc1 {ENDL[0]}")
    a(f"s_cbranch_vccnz {L}")
    a("ds_write_b128 v10, v[32:35]\nds_write_b128 v11, v[36:39]\nds_write_b128 v12, v[40:43]")

def proj(a, swap):
    for u in range(3):
        a(f"ds_read_b128 v[{64+4*u}:{64+4*u+3}], v14 offset:{u*512}")
    for u in range(20):
        if u + 3 < 20:
            r = 64 + 4*((u+3) % 4)
            a(f"ds_read_b128 v[{r}:{r+3}], v14 offset:{(u+3)*512}")
        a(f"s_waitcnt lgkmcnt({min(3, 19-u)})")
        r = 64 + 4*(u % 4)
        for T in range(4):
            d = f"v[{48+4*T}:{48+4*T+3}]"
            c = d if u else "0"
            w = wreg(T*20+u)
            if swap: a(f"v_mfma_f32_16x16x32_bf16 {d}, v[{r}:{r+3}], {w}, {c}")
            else:    a(f"v_mfma_f32_16x16x32_bf16 {d}, {w}, v[{r}:{r+3}], {c}")

def xlane_allreduce(a, op, v, t):
    a(f"v_mov_b32 {t}, {v}")
    a("s_nop 1")
    a(f"v_permlane32_swap_b32 {t}, {v}")
    a("s_nop 1")
    a(f"{op} {v}, {v}, {t}")
    a(f"v_mov_b32 {t}, {v}")
    a("s_nop 1")
    a(f"v_permlane16_swap_b32 {t}, {v}")
    a("s_nop 1")
    a(f"{op} {v}, {v}, {t}")

def nosent(a, v):
    a(f"v_cmp_eq_u32 vcc, -1, {v}")
    a("s_nop 1")
    a(f"v_cndmask_b32 {v}, {v}, v31, vcc")

def stamp_cnt(a, on, idx):
    if not on: return
    a(f"v_mov_b32 v28, s36\nv_mov_b32 v29, 0")
    a(f"s_lshl_b32 s72, s21, 6\ns_add_u32 s72, s72, s73")
    a(f"buffer_store_dwordx2 v[28:29], v30, s[24:27], s72 offen offset:{idx*8}")

def stamp(a, on, idx):
    if not on: return
    a("s_memtime s[70:71]")
    a("s_waitcnt lgkmcnt(0)")
    a(f"v_mov_b32 v28, s70\nv_mov_b32 v29, s71")
    a(f"s_lshl_b32 s72, s21, 6\ns_add_u32 s72, s72, s73")
    a(f"buffer_store_dwordx2 v[28:29], v30, s[24:27], s72 offen offset:{idx*8}")

def gen_rec(a, name, prof=False):
    kernel_begin(a, name)
    a("s_load_dwordx2 s[4:5], s[0:1], %d" % KA["ws"])
    a("v_lshrrev_b32 v1, 6, v0")
    a("v_and_b32 v2, 63, v0")
    a("v_readfirstlane_b32 s3, v1")
    LCOL = a.newlabel("COL"); LEND = a.newlabel("END")
    ENDL[0] = LEND
    a("s_mov_b32 s36, 0")
    a("s_cmp_ge_u32 s2, 112")
    a(f"s_cbranch_scc1 {LEND}")
    a("s_waitcnt lgkmcnt(0)")
    srd(a, 24, 4, 0x10000000)
    a("v_and_b32 v3, 15, v2")
    a("v_lshrrev_b32 v4, 4, v2")
    a("v_and_b32 v5, 7, v2")
    a("v_mov_b32 v31, 0x7fc07fc0")
    a("v_mov_b32 v30, 0")
    a("s_mul_i32 s6, s3, 160")
    a("v_add_u32 v10, s6, v2\nv_add_u32 v11, 64, v10")
    a("v_and_b32 v12, 31, v2\nv_add_u32 v12, s6, v12\nv_add_u32 v12, 0x80, v12")
    a("v_lshlrev_b32 v10, 4, v10\nv_lshlrev_b32 v11, 4, v11\nv_lshlrev_b32 v12, 4, v12")
    a("v_lshlrev_b32 v14, 7, v4\nv_lshl_add_u32 v14, v5, 4, v14")
    a(f"s_mov_b32 s20, {hex(WS['MEMX'])}")
    a("s_mov_b32 s21, 0")
    if prof:
        a("s_cmp_eq_u32 s2, 0\ns_cselect_b32 s75, 0, 1\ns_cmp_eq_u32 s2, 32\ns_cselect_b32 s75, 0, s75\ns_or_b32 s75, s75, s3")
        a(f"s_mov_b32 s74, {hex(WS['STAMP'])}\ns_mov_b32 s73, {hex(WS['STAMP']+8192)}")
        a("s_cmp_eq_u32 s2, 32\ns_cselect_b32 s73, s73, s74")
        a("s_cmp_eq_u32 s75, 0\ns_cselect_b32 s73, s73, 0x7ff00000")
    a("s_cmp_ge_u32 s2, 32")
    a(f"s_cbranch_scc1 {LCOL}")

    a("v_lshrrev_b32 v6, 3, v3\nv_lshlrev_b32 v6, 4, v6\nv_add_u32 v6, v6, v5")
    a("v_and_b32 v7, 1, v4\nv_lshl_add_u32 v6, v7, 5, v6")
    a("v_lshlrev_b32 v6, 4, v6")
    a("v_lshrrev_b32 v7, 1, v4\nv_lshl_add_u32 v6, v7, 10, v6")
    a("s_lshl_b32 s7, s2, 2\ns_add_u32 s7, s7, s3")
    a("s_mul_i32 s7, s7, 40960")
    a(f"s_add_u32 s7, s7, {hex(WS['WQK'])}")
    for T in range(4):
        for u in range(20):
            off = (T//2)*128*40960 + u*2048 + (T % 2)*128
            a(f"s_add_u32 s8, s7, {off}")
            a(f"buffer_load_dwordx4 {wreg(T*20+u)}, v6, s[24:27], s8 offen")
    a("s_lshl_b32 s9, s2, 19\ns_lshl_b32 s8, s3, 11\ns_add_u32 s9, s9, s8")
    a(f"s_add_u32 s22, s9, {hex(WS['K'])}")
    a("v_lshlrev_b32 v15, 7, v4\nv_lshl_add_u32 v15, v3, 4, v15")
    a("s_lshl_b32 s23, s2, 11\ns_lshl_b32 s8, s3, 9\ns_add_u32 s23, s23, s8")
    a(f"s_add_u32 s23, s23, {hex(WS['KM'])}")
    a("s_mul_i32 s28, s2, 640")
    a(f"s_add_u32 s28, s28, {hex(WS['PX'])}")
    a("v_lshlrev_b32 v16, 4, v3\nv_lshl_add_u32 v16, v4, 3, v16\nv_add_u32 v16, 0x200, v16")
    a("s_mul_i32 s8, s3, 3072\nv_lshlrev_b32 v17, 4, v2\nv_add_u32 v18, s8, v17\nv_add_u32 v18, 0x2800, v18\nv_add_u32 v17, 0x2800, v17")
    a("v_cmp_gt_u32 s[30:31], 8, v3")
    a("v_cmp_gt_u32 s[32:33], 2, v4")
    a("s_and_b64 s[32:33], s[32:33], s[30:31]")
    a("buffer_load_dwordx4 v[80:83], v6, s[24:27], s22 offen")
    a("buffer_load_dwordx4 v[84:87], v6, s[24:27], s22 offen offset:128")
    a("s_waitcnt vmcnt(0)")
    LH = a.newlabel("HL"); LHN = a.newlabel("HN"); LHW = a.newlabel("HW")
    a.label(LH)
    stamp(a, prof, 0)
    poll_mem(a)
    stamp(a, prof, 1)
    stamp_cnt(a, prof, 6)
    a("s_waitcnt lgkmcnt(0)\ns_barrier")
    proj(a, swap=False)
    stamp(a, prof, 2)
    a("s_nop 7")
    for T in range(4):
        a(f"v_cvt_pk_bf16_f32 v{88+2*T}, v{48+4*T}, v{49+4*T}\nv_cvt_pk_bf16_f32 v{89+2*T}, v{50+4*T}, v{51+4*T}")
    a("s_mov_b64 exec, s[30:31]")
    a("buffer_store_dwordx4 v[92:95], v15, s[24:27], s23 offen")
    a("s_mov_b64 exec, -1")
    a(f"s_cmp_eq_u32 s21, {NSTEP-1}")
    a(f"s_cbranch_scc1 {LEND}")
    a("v_mfma_f32_16x16x32_bf16 v[48:51], v[92:95], v[88:91], 0")
    a("v_mfma_f32_16x16x32_bf16 v[52:55], v[80:83], v[88:91], 0")
    a("v_mfma_f32_16x16x32_bf16 v[56:59], v[84:87], v[88:91], 0")
    a("s_add_u32 s22, s22, 8192")
    a("s_nop 5")
    a("ds_write_b128 v18, v[48:51]\nds_write_b128 v18, v[52:55] offset:1024\nds_write_b128 v18, v[56:59] offset:2048")
    a("buffer_load_dwordx4 v[80:83], v6, s[24:27], s22 offen")
    a("buffer_load_dwordx4 v[84:87], v6, s[24:27], s22 offen offset:128")
    a("s_waitcnt lgkmcnt(0)\ns_barrier")
    a("s_cmp_lg_u32 s3, 0")
    a(f"s_cbranch_scc1 {LHN}")
    for w in range(4):
        for t in range(3):
            r = 96 + (w*3+t)*4
            a(f"ds_read_b128 v[{r}:{r+3}], v17 offset:{w*3072+t*1024}")
    a("s_waitcnt lgkmcnt(6)")
    for i in range(12):
        a(f"v_add_f32 v{96+i}, v{96+i}, v{108+i}")
    a("s_waitcnt lgkmcnt(0)")
    for i in range(12):
        a(f"v_add_f32 v{120+i}, v{120+i}, v{132+i}")
    for i in range(12):
        a(f"v_add_f32 v{96+i}, v{96+i}, v{120+i}")
    a("v_max3_f32 v44, v96, v97, v98\nv_max3_f32 v45, v99, v100, v101\nv_max3_f32 v46, v102, v103, v104\nv_max3_f32 v47, v105, v106, v107")
    a("v_max3_f32 v44, v44, v45, v46\nv_max_f32 v44, v44, v47")
    xlane_allreduce(a, "v_max_f32", "v44", "v45")
    a("s_mov_b32 s10, 0x3e0293ee")
    a("v_mul_f32 v44, s10, v44")
    for i in range(12):
        a(f"v_fma_f32 v{96+i}, v{96+i}, s10, -v44")
    for i in range(12):
        a(f"v_exp_f32 v{96+i}, v{96+i}")
    a("v_cmp_gt_u32 vcc, 2, v4")
    a("v_add_f32 v45, v96, v97\nv_add_f32 v46, v98, v99\nv_add_f32 v45, v45, v46")
    a("v_cndmask_b32 v45, 0, v45, vcc")
    a("v_add_f32 v46, v100, v101\nv_add_f32 v47, v102, v103\nv_add_f32 v45, v45, v46\nv_add_f32 v45, v45, v47")
    a("v_add_f32 v46, v104, v105\nv_add_f32 v47, v106, v107\nv_add_f32 v45, v45, v46\nv_add_f32 v45, v45, v47")
    xlane_allreduce(a, "v_add_f32", "v45", "v46")
    a("v_rcp_f32 v45, v45")
    a("s_nop 0")
    for i in range(12):
        a(f"v_mul_f32 v{96+i}, v{96+i}, v45")
    for i in range(6):
        a(f"v_cvt_pk_bf16_f32 v{108+i}, v{96+2*i}, v{97+2*i}")
    for i in range(6):
        nosent(a, f"v{108+i}")
    a("s_mov_b64 exec, s[30:31]")
    a("buffer_store_dwordx4 v[110:113], v15, s[24:27], s28 offen sc1")
    a("s_mov_b64 exec, s[32:33]")
    a("buffer_store_dwordx2 v[108:109], v16, s[24:27], s28 offen sc1")
    a("s_mov_b64 exec, -1")
    stamp(a, prof, 3)
    a.label(LHN)
    a("s_add_u32 s20, s20, 10240\ns_add_u32 s21, s21, 1\ns_add_u32 s23, s23, 65536\ns_add_u32 s28, s28, 20480")
    a(f"s_branch {LH}")

    a.label(LCOL)
    a("s_sub_u32 s6, s2, 32")
    a("s_lshr_b32 s7, s6, 2")
    a("s_lshr_b32 s8, s6, 1\ns_and_b32 s8, s8, 1\ns_lshl_b32 s8, s8, 4\ns_and_b32 s9, s6, 1\ns_lshl_b32 s9, s9, 2\ns_add_u32 s8, s8, s9")
    a("v_and_b32 v6, 3, v2\nv_bfe_u32 v7, v2, 2, 1\nv_lshl_add_u32 v6, v7, 3, v6\nv_add_u32 v6, s8, v6")
    a("v_mov_b32 v19, v6")
    a("v_and_b32 v7, 1, v4\nv_lshl_add_u32 v6, v7, 5, v6\nv_lshlrev_b32 v6, 4, v6")
    a("v_lshrrev_b32 v7, 1, v4\nv_lshl_add_u32 v6, v7, 10, v6")
    a("v_lshrrev_b32 v8, 3, v3")
    a("v_mul_u32_u24 v9, %d, v8" % (20*20*2048))
    a("v_add_u32 v9, v9, v6")
    a("v_mul_u32_u24 v20, %d, v8" % (20*2048))
    a("v_add_u32 v20, v20, v6")
    a("s_lshl_b32 s9, s3, 3\ns_mul_i32 s9, s9, 20\ns_add_u32 s9, s9, s7")
    a("s_mul_i32 s10, s9, %d" % (20*2048))
    a(f"s_add_u32 s10, s10, {hex(WS['BM'])}")
    for T in range(4):
        for u in range(20):
            off = T*2*20*20*2048 + u*2048
            a(f"s_add_u32 s8, s10, {off}")
            a(f"buffer_load_dwordx4 {wreg(T*20+u)}, v9, s[24:27], s8 offen")
    a("s_lshl_b32 s22, s9, 11")
    a(f"s_add_u32 s22, s22, {hex(WS['UX'])}")
    a("v_mul_u32_u24 v21, 640, v8\nv_lshl_add_u32 v21, v4, 7, v21\nv_lshl_add_u32 v21, v5, 4, v21")
    a("v_lshl_add_u32 v22, v8, 2, v4\nv_mul_u32_u24 v22, 640, v22\nv_lshl_add_u32 v22, v5, 4, v22\nv_add_u32 v22, 0x200, v22")
    a("s_mul_i32 s28, s3, %d" % (8*640))
    a(f"s_add_u32 s28, s28, {hex(WS['PX'])}")
    a("s_lshl_b32 s8, s3, 10")
    a("v_lshlrev_b32 v23, 4, v3\nv_lshl_add_u32 v23, v4, 3, v23\nv_add_u32 v23, s8, v23\nv_add_u32 v23, 0x2800, v23")
    a("v_lshl_add_u32 v24, v8, 2, v4\nv_lshlrev_b32 v24, 7, v24\nv_lshl_add_u32 v24, v5, 4, v24\nv_add_u32 v24, s8, v24\nv_add_u32 v24, 0x2800, v24")
    a("v_mul_u32_u24 v25, 10240, v8\nv_lshl_add_u32 v25, v19, 4, v25\nv_lshl_add_u32 v25, v4, 3, v25")
    a("s_mul_i32 s23, s3, %d" % (8*10240))
    a("s_lshl_b32 s8, s7, 9\ns_add_u32 s23, s23, s8")
    a(f"s_add_u32 s23, s23, {hex(WS['UM'])}")
    a("s_lshl_b32 s8, s3, 10\nv_lshlrev_b32 v26, 4, v2\nv_add_u32 v26, s8, v26\nv_add_u32 v26, 0x3800, v26")
    a("v_bfe_u32 v27, v2, 3, 1\nv_lshlrev_b32 v27, 8, v27\nv_lshl_add_u32 v27, v5, 4, v27\nv_add_u32 v27, 0x3800, v27")
    a("v_bfe_u32 v13, v2, 3, 1\nv_lshlrev_b32 v13, 3, v13\nv_lshl_add_u32 v13, v5, 4, v13")
    a("s_lshl_b32 s29, s6, 7")
    a(f"s_add_u32 s29, s29, {hex(WS['MEMX']+10240)}")
    a("v_cmp_gt_u32 s[32:33], 2, v4")
    a("v_cmp_gt_u32 s[34:35], 16, v2")
    for t in range(4):
        a(f"s_add_u32 s8, s22, {t*2*20*2048}")
        a(f"buffer_load_dwordx4 v[{80+4*t}:{83+4*t}], v20, s[24:27], s8 offen")
    a("s_waitcnt vmcnt(0)")
    LC = a.newlabel("CL"); LCN = a.newlabel("CN"); LCP = a.newlabel("CP")
    a.label(LC)
    stamp(a, prof, 0)
    poll_mem(a)
    stamp(a, prof, 1)
    stamp_cnt(a, prof, 6)
    a("s_waitcnt lgkmcnt(0)\ns_barrier")
    proj(a, swap=True)
    a("s_nop 7")
    for T in range(4):
        a(f"v_cvt_pk_bf16_f32 v{96+2*T}, v{48+4*T}, v{49+4*T}\nv_cvt_pk_bf16_f32 v{97+2*T}, v{50+4*T}, v{51+4*T}")
    a("s_mov_b64 exec, s[32:33]")
    for T in range(4):
        a(f"ds_write_b64 v23, v[{96+2*T}:{97+2*T}] offset:{T*256}")
    for T in range(4):
        a(f"s_add_u32 s8, s23, {T*2*10240}")
        a(f"buffer_store_dwordx2 v[{96+2*T}:{97+2*T}], v25, s[24:27], s8 offen")
    a("s_mov_b64 exec, -1")
    a(f"s_cmp_eq_u32 s21, {NSTEP-1}")
    a(f"s_cbranch_scc1 {LEND}")
    a("s_waitcnt lgkmcnt(0)")
    a("ds_read_b128 v[104:107], v24")
    stamp(a, prof, 2)
    a.label(LCP)
    for t in range(4):
        a(f"buffer_load_dwordx4 v[{108+4*t}:{111+4*t}], v21, s[24:27], s28 offen offset:{t*1280} sc1")
    a("buffer_load_dwordx4 v[124:127], v22, s[24:27], s28 offen sc1")
    a("s_waitcnt vmcnt(0)")
    for i in range(6):
        a(f"v_max3_u32 v{44+i%3 if i<3 else 128+i}, v{108+3*i}, v{109+3*i}, v{110+3*i}")
    a("v_max3_u32 v44, v44, v45, v46\nv_max3_u32 v44, v44, v131, v132\nv_max3_u32 v44, v44, v133, v126\nv_max_u32 v44, v44, v127")
    a("v_cmp_eq_u32 vcc, -1, v44")
    a(f"s_add_u32 s36, s36, 1\ns_cmp_gt_u32 s36, 0x400000\ns_cbranch_scc1 {ENDL[0]}")
    a(f"s_cbranch_vccnz {LCP}")
    stamp(a, prof, 3)
    stamp_cnt(a, prof, 7)
    a("s_waitcnt lgkmcnt(0)")
    a("v_mfma_f32_16x16x32_bf16 v[48:51], v[104:107], v[124:127], 0")
    a("v_mfma_f32_16x16x32_bf16 v[52:55], v[80:83], v[108:111], 0")
    a("v_mfma_f32_16x16x32_bf16 v[48:51], v[84:87], v[112:115], v[48:51]")
    a("v_mfma_f32_16x16x32_bf16 v[52:55], v[88:91], v[116:119], v[52:55]")
    a("v_mfma_f32_16x16x32_bf16 v[48:51], v[92:95], v[120:123], v[48:51]")
    a("s_add_u32 s22, s22, %d" % (32*20*2048))
    a("s_nop 6")
    for i in range(4):
        a(f"v_add_f32 v{48+i}, v{48+i}, v{52+i}")
    a("ds_write_b128 v26, v[48:51]")
    for t in range(4):
        a(f"s_add_u32 s8, s22, {t*2*20*2048}")
        a(f"buffer_load_dwordx4 v[{80+4*t}:{83+4*t}], v20, s[24:27], s8 offen")
    a("s_waitcnt lgkmcnt(0)\ns_barrier")
    a("s_cmp_lg_u32 s3, 0")
    a(f"s_cbranch_scc1 {LCN}")
    for w in range(4):
        for p in range(2):
            r = 108 + (w*2+p)*4
            a(f"ds_read_b128 v[{r}:{r+3}], v27 offset:{w*1024 + p*(8*16 + 32*16)}")
    a("s_waitcnt lgkmcnt(0)")
    for k in (16, 8, 4):
        for i in range(k):
            a(f"v_add_f32 v{108+i}, v{108+i}, v{108+k+i}")
    a("v_cvt_pk_bf16_f32 v112, v108, v109\nv_cvt_pk_bf16_f32 v113, v110, v111")
    nosent(a, "v112"); nosent(a, "v113")
    a("s_mov_b64 exec, s[34:35]")
    a("buffer_store_dwordx2 v[112:113], v13, s[24:27], s29 offen sc1")
    a("s_mov_b64 exec, -1")
    stamp(a, prof, 4)
    a.label(LCN)
    a("s_add_u32 s20, s20, 10240\ns_add_u32 s21, s21, 1\ns_add_u32 s29, s29, 10240\ns_add_u32 s28, s28, 20480")
    a("s_add_u32 s23, s23, %d" % (32*10240))
    a(f"s_branch {LC}")
    a.label(LEND)
    a("s_endpgm")
    return 112
```

```python
from common import *
from k1_gemm import gemm_core, cvt_chunk, mfma32
from k0_prep import gen_ln_row
from k2_rec import xlane_allreduce

_add = None
import common
common._add("PT", 64*32*3*1024)
common._add("HN", 64*40*1024)
assert common._off <= 268435456

def prolog(a, name, nwg, per_wave=False):
    kernel_begin(a, name)
    a("s_load_dwordx2 s[4:5], s[0:1], %d" % KA["ws"])
    a("v_lshrrev_b32 v1, 6, v0")
    a("v_and_b32 v2, 63, v0")
    a("v_readfirstlane_b32 s3, v1")
    a("v_lshlrev_b32 v16, 4, v2")
    LEND = a.newlabel("END")
    a(f"s_cmp_ge_u32 s2, {nwg}")
    a(f"s_cbranch_scc1 {LEND}")
    a("s_waitcnt lgkmcnt(0)")
    srd(a, 24, 4, 0x10000000)
    return LEND

def gen_attn(a, name):
    LEND = prolog(a, name, 512)
    a("s_lshl_b32 s6, s2, 2\ns_add_u32 s6, s6, s3")
    a("s_lshr_b32 s7, s6, 5\ns_and_b32 s8, s6, 31")
    a("s_lshl_b32 s9, s8, 6\ns_add_u32 s9, s9, s7\ns_lshl_b32 s9, s9, 13")
    a(f"s_add_u32 s10, s9, {hex(WS['Q'])}\ns_add_u32 s11, s9, {hex(WS['K'])}")
    a("s_lshl_b32 s12, s6, 11")
    a(f"s_add_u32 s12, s12, {hex(WS['KM'])}")
    a("v_and_b32 v3, 7, v2\nv_lshrrev_b32 v4, 5, v2\nv_lshlrev_b32 v3, 4, v3\nv_lshl_add_u32 v3, v4, 7, v3")
    a("v_add_u32 v17, 0x1000, v16")
    for es in range(8):
        vv, off = ("v16", es*1024) if es < 4 else ("v17", (es-4)*1024)
        a(f"buffer_load_dwordx4 v[{32+es*4}:{35+es*4}], {vv}, s[24:27], s10 offen offset:{off}")
        a(f"buffer_load_dwordx4 v[{64+es*4}:{67+es*4}], {vv}, s[24:27], s11 offen offset:{off}")
        a(f"buffer_load_dwordx4 v[{96+es*4}:{99+es*4}], v3, s[24:27], s12 offen offset:{es*256}")
    for es in range(8):
        a(f"s_waitcnt vmcnt({(7-es)*3})")
        c1 = "v[128:143]" if es else "0"; c2 = "v[144:159]" if es else "0"
        a(f"v_mfma_f32_32x32x16_bf16 v[128:143], v[{64+es*4}:{67+es*4}], v[{32+es*4}:{35+es*4}], {c1}")
        a(f"v_mfma_f32_32x32x16_bf16 v[144:159], v[{96+es*4}:{99+es*4}], v[{32+es*4}:{35+es*4}], {c2}")
    a("v_and_b32 v5, 31, v2")
    a("v_lshlrev_b32 v6, 2, v4\nv_sub_u32 v5, v5, v6")
    a("v_mov_b32 v7, 0xff800000")
    a("s_nop 7\ns_nop 3")
    for v in range(16):
        kr = 8*(v//4) + v % 4
        a(f"v_cmp_le_i32 vcc, {kr}, v5")
        a("s_nop 1")
        a(f"v_cndmask_b32 v{128+v}, v7, v{128+v}, vcc")
    a("v_max3_f32 v8, v128, v129, v130")
    for i in range(131, 147, 2):
        a(f"v_max3_f32 v8, v8, v{i}, v{i+1}")
    a("v_max_f32 v8, v8, v147")
    a("v_mov_b32 v9, v8\ns_nop 1\nv_permlane32_swap_b32 v9, v8\ns_nop 1\nv_max_f32 v8, v8, v9")
    a("s_mov_b32 s13, 0x3e0293ee")
    a("v_mul_f32 v8, s13, v8")
    for i in range(128, 148):
        a(f"v_fma_f32 v{i}, v{i}, s13, -v8")
    for i in range(128, 148):
        a(f"v_exp_f32 v{i}, v{i}")
    a("s_nop 0\nv_add_f32 v9, v128, v129")
    for i in range(130, 148):
        a(f"v_add_f32 v9, v9, v{i}")
    a("v_mov_b32 v10, v9\ns_nop 1\nv_permlane32_swap_b32 v10, v9\ns_nop 1\nv_add_f32 v9, v9, v10")
    a("v_rcp_f32 v9, v9\ns_nop 0")
    for i in range(128, 148):
        a(f"v_mul_f32 v{i}, v{i}, v9")
    for i in range(8):
        a(f"v_cvt_pk_bf16_f32 v{32+i}, v{128+2*i}, v{129+2*i}")
    a("v_cvt_pk_bf16_f32 v40, v144, v145\nv_cvt_pk_bf16_f32 v41, v146, v147\nv_mov_b32 v42, 0\nv_mov_b32 v43, 0")
    a("s_mul_i32 s14, s6, 3072")
    a(f"s_add_u32 s14, s14, {hex(WS['PT'])}")
    for k in range(3):
        a(f"buffer_store_dwordx4 v[{32+4*k}:{35+4*k}], v16, s[24:27], s14 offen offset:{k*1024}")
    a.label(LEND)
    a("s_endpgm")
    return 512

def gen_ugemm(a, name):
    LEND = prolog(a, name, 256)
    a(f"s_load_dwordx2 s[8:9], s[0:1], {KA['x']}")
    a("s_lshr_b32 s6, s2, 2\ns_and_b32 s7, s2, 3")
    a("s_lshl_b32 s10, s6, 5\ns_lshl_b32 s11, s3, 3\ns_add_u32 s10, s10, s11")
    a("s_mul_i32 s12, s10, 20\ns_mul_i32 s13, s7, 5\ns_add_u32 s12, s12, s13\ns_lshl_b32 s12, s12, 11")
    a(f"s_add_u32 s12, s12, {hex(WS['UX'])}")
    a("s_mul_i32 s14, s10, 10240\ns_mul_i32 s13, s7, 2560\ns_add_u32 s14, s14, s13")
    a(f"s_add_u32 s14, s14, {hex(WS['UM'])}")
    a("v_and_b32 v3, 31, v2\nv_lshrrev_b32 v4, 5, v2\nv_lshlrev_b32 v5, 4, v3\nv_lshl_add_u32 v5, v4, 3, v5")
    a("s_mul_i32 s15, s10, 3072")
    a(f"s_add_u32 s15, s15, {hex(WS['PT'])}")
    def bufbase(b): return 32 + b*76
    for b in range(2):
        for ct in range(5):
            r = bufbase(b) + 52 + ct*4
            a(f"v_mov_b32 v{r+2}, 0\nv_mov_b32 v{r+3}, 0")
    def loads(b):
        B = bufbase(b)
        for k in range(3):
            a(f"buffer_load_dwordx4 v[{B+4*k}:{B+4*k+3}], v16, s[24:27], s15 offen offset:{k*1024}")
        for ct in range(5):
            a(f"s_add_u32 s16, s12, {ct*2048}")
            for ap in range(2):
                r = B + 12 + (ct*2+ap)*4
                a(f"buffer_load_dwordx4 v[{r}:{r+3}], v16, s[24:27], s16 offen offset:{ap*1024}")
            r = B + 52 + ct*4
            a(f"buffer_load_dwordx2 v[{r}:{r+1}], v5, s[24:27], s14 offen offset:{ct*512}")
        a(f"s_add_u32 s15, s15, 3072\ns_add_u32 s12, s12, {20*2048}\ns_add_u32 s14, s14, 10240")
    loads(0)
    for hh in range(8):
        b = hh % 2
        if hh < 7: loads(1-b)
        a(f"s_waitcnt vmcnt({18 if hh < 7 else 0})")
        B = bufbase(b)
        for k in range(3):
            for ct in range(5):
                d = f"a[{ct*16}:{ct*16+15}]"
                c = d if (hh or k) else "0"
                r = B + 12 + (ct*2+k)*4 if k < 2 else B + 52 + ct*4
                mfma32(a, d, f"v[{r}:{r+3}]", f"v[{B+4*k}:{B+4*k+3}]", c)
    a("s_nop 15")
    a(f"s_mul_i32 s16, s3, {5*4096}\nv_add_u32 v6, s16, v16")
    for ct in range(5):
        for qd in range(4):
            for r in range(4):
                a(f"v_accvgpr_read_b32 v{32+(qd%2)*4+r}, a{ct*16+qd*4+r}")
            a(f"ds_write_b128 v6, v[{32+(qd%2)*4}:{35+(qd%2)*4}] offset:{ct*4096+qd*1024}")
    a("s_waitcnt lgkmcnt(0)\ns_barrier")
    srd(a, 28, 8, 2048*1280)
    a("v_mul_u32_u24 v7, 1280, v3\nv_lshl_add_u32 v7, v4, 3, v7")
    a("s_mul_i32 s17, s6, %d" % (32*1280))
    a("s_mul_i32 s18, s7, 320\ns_add_u32 s17, s17, s18\ns_lshl_b32 s18, s3, 4\ns_add_u32 s17, s17, s18")
    a(f"s_add_u32 s19, s17, {hex(WS['H'])}")
    a("s_lshl_b32 s16, s3, 10\nv_add_u32 v6, s16, v16")
    for ct in range(5):
        a(f"buffer_load_dwordx2 v[{100+2*ct}:{101+2*ct}], v7, s[28:31], s17 offen offset:{ct*64}")
    for ct in range(5):
        for w in range(4):
            a(f"ds_read_b128 v[{32+w*4}:{35+w*4}], v6 offset:{w*5*4096+ct*4096}" if w*5*4096+ct*4096 < 65536 else
              f"ds_read_b128 v[{32+w*4}:{35+w*4}], v8 offset:{w*5*4096+ct*4096-61440}")
            if ct == 0 and w == 0:
                a("v_add_u32 v8, 0xf000, v6")
        a("s_waitcnt lgkmcnt(0)")
        for r in range(4):
            a(f"v_add_f32 v{32+r}, v{32+r}, v{36+r}\nv_add_f32 v{40+r}, v{40+r}, v{44+r}\nv_add_f32 v{32+r}, v{32+r}, v{40+r}")
        a("v_cvt_pk_bf16_f32 v48, v32, v33\nv_cvt_pk_bf16_f32 v49, v34, v35")
        a(f"s_waitcnt vmcnt({4-ct + ct})")
        a(f"s_waitcnt vmcnt({ct})" if False else "")
        x0, x1 = 100+2*ct, 101+2*ct
        a(f"v_lshlrev_b32 v32, 16, v48\nv_and_b32 v33, 0xffff0000, v48\nv_lshlrev_b32 v34, 16, v49\nv_and_b32 v35, 0xffff0000, v49")
        a(f"v_lshlrev_b32 v36, 16, v{x0}\nv_and_b32 v37, 0xffff0000, v{x0}\nv_lshlrev_b32 v38, 16, v{x1}\nv_and_b32 v39, 0xffff0000, v{x1}")
        for r in range(4):
            a(f"v_add_f32 v{32+r}, v{32+r}, v{36+r}")
        a(f"v_cvt_pk_bf16_f32 v{50+2*(ct%2)}, v32, v33\nv_cvt_pk_bf16_f32 v{51+2*(ct%2)}, v34, v35")
        a(f"buffer_store_dwordx2 v[{50+2*(ct%2)}:{51+2*(ct%2)}], v7, s[24:27], s19 offen offset:{ct*64}")
    a.label(LEND)
    a("s_endpgm")
    return 256, 4*5*4096

def gen_ln2(a, name):
    LEND = prolog(a, name, 512)
    a("s_lshl_b32 s7, s2, 2\ns_add_u32 s7, s7, s3")
    a(f"s_add_u32 s8, s4, {hex(WS['H'])}\ns_addc_u32 s9, s5, 0")
    srd(a, 20, 8, 2048*1280)
    gen_ln_row(a, 20, 7, WS["HN"], "v2")
    a.label(LEND)
    a("s_endpgm")
    return 512

def gen_up(a, name):
    LEND = prolog(a, name, 14*16)
    a("s_lshr_b32 s11, s2, 4\ns_and_b32 s12, s2, 15")
    a("s_mul_i32 s60, s11, %d" % (8*40960))
    a(f"s_add_u32 s60, s60, {hex(WS['W13'])}")
    a("s_mul_i32 s61, s12, %d" % (4*40960))
    a(f"s_add_u32 s61, s61, {hex(WS['HN'])}")
    lds = gemm_core(a, 20, 60, 61, NI=4, NJ=2)
    a("s_lshr_b32 s14, s3, 1\ns_and_b32 s15, s3, 1")
    a("s_lshl_b32 s16, s11, 2\ns_lshl_b32 s17, s14, 1\ns_add_u32 s16, s16, s17")
    a("s_lshl_b32 s17, s12, 2\ns_lshl_b32 s18, s15, 1\ns_add_u32 s17, s17, s18")
    a(f"s_cmp_ge_u32 s16, 54")
    a(f"s_cbranch_scc1 {LEND}")
    a("s_mul_i32 s18, s17, %d" % (108*1024))
    a("s_lshl_b32 s19, s16, 11\ns_add_u32 s18, s18, s19")
    a(f"s_add_u32 s18, s18, {hex(WS['ACT'])}")
    a("s_mov_b32 s20, 0xbfb8aa3b")
    for pr in range(2):
        for j in range(2):
            for ap in range(2):
                g = ((2*pr)*2 + j)*16 + ap*8
                u = ((2*pr+1)*2 + j)*16 + ap*8
                for r in range(8):
                    a(f"v_accvgpr_read_b32 v{32+r}, a{g+r}\nv_accvgpr_read_b32 v{40+r}, a{u+r}")
                for r in range(0, 8, 2):
                    a(f"v_cvt_pk_bf16_f32 v48, v{32+r}, v{33+r}\nv_lshlrev_b32 v{32+r}, 16, v48\nv_and_b32 v{33+r}, 0xffff0000, v48")
                    a(f"v_cvt_pk_bf16_f32 v48, v{40+r}, v{41+r}\nv_lshlrev_b32 v{40+r}, 16, v48\nv_and_b32 v{41+r}, 0xffff0000, v48")
                for r in range(8):
                    a(f"v_mul_f32 v{48+r}, s20, v{32+r}")
                for r in range(8):
                    a(f"v_exp_f32 v{48+r}, v{48+r}")
                for r in range(8):
                    a(f"v_add_f32 v{48+r}, 1.0, v{48+r}")
                for r in range(8):
                    a(f"v_rcp_f32 v{48+r}, v{48+r}")
                for r in range(8):
                    a(f"v_mul_f32 v{32+r}, v{32+r}, v{48+r}")
                for r in range(0, 8, 2):
                    a(f"v_cvt_pk_bf16_f32 v48, v{32+r}, v{33+r}\nv_lshlrev_b32 v{32+r}, 16, v48\nv_and_b32 v{33+r}, 0xffff0000, v48")
                for r in range(8):
                    a(f"v_mul_f32 v{32+r}, v{32+r}, v{40+r}")
                t = 56 + 4*((j*2+ap) % 2)
                for r in range(4):
                    a(f"v_cvt_pk_bf16_f32 v{t+r}, v{32+2*r}, v{33+2*r}")
                a(f"s_add_u32 s21, s18, {j*108*1024 + pr*2048 + ap*1024}")
                a(f"buffer_store_dwordx4 v[{t}:{t+3}], v16, s[24:27], s21 offen")
    a.label(LEND)
    a("s_endpgm")
    return 14*16, lds

def gen_down(a, name):
    LEND = prolog(a, name, 160)
    a(f"s_load_dwordx2 s[8:9], s[0:1], {KA['out']}")
    a("s_lshr_b32 s11, s2, 5\ns_and_b32 s12, s2, 31")
    a("s_mul_i32 s60, s11, %d" % (4*108*1024))
    a(f"s_add_u32 s60, s60, {hex(WS['W2'])}")
    a("s_mul_i32 s61, s12, %d" % (2*108*1024))
    a(f"s_add_u32 s61, s61, {hex(WS['ACT'])}")
    lds = gemm_core(a, 54, 60, 61, NI=2, NJ=1, KSA=108, KSB=108)
    srd(a, 28, 8, 2048*1280)
    a("s_lshr_b32 s14, s3, 1\ns_and_b32 s15, s3, 1")
    a("s_lshl_b32 s16, s11, 2\ns_lshl_b32 s17, s14, 1\ns_add_u32 s16, s16, s17")
    a("s_lshl_b32 s17, s12, 1\ns_add_u32 s17, s17, s15")
    a("s_mul_i32 s18, s17, %d" % (32*1280))
    a("s_lshl_b32 s19, s16, 6\ns_add_u32 s18, s18, s19")
    a(f"s_add_u32 s19, s18, {hex(WS['H'])}")
    a("v_and_b32 v3, 31, v2\nv_lshrrev_b32 v4, 5, v2\nv_mul_u32_u24 v7, 1280, v3\nv_lshl_add_u32 v7, v4, 3, v7")
    for i in range(2):
        for q in range(4):
            k = i*4+q
            a(f"buffer_load_dwordx2 v[{100+2*k}:{101+2*k}], v7, s[24:27], s19 offen offset:{i*64+q*16}")
    a("s_waitcnt vmcnt(0)")
    for i in range(2):
        for q in range(4):
            k = i*4+q
            for r in range(4):
                a(f"v_accvgpr_read_b32 v{32+r}, a{i*16+q*4+r}")
            a("v_cvt_pk_bf16_f32 v48, v32, v33\nv_cvt_pk_bf16_f32 v49, v34, v35")
            x0, x1 = 100+2*k, 101+2*k
            a(f"v_lshlrev_b32 v32, 16, v48\nv_and_b32 v33, 0xffff0000, v48\nv_lshlrev_b32 v34, 16, v49\nv_and_b32 v35, 0xffff0000, v49")
            a(f"v_lshlrev_b32 v36, 16, v{x0}\nv_and_b32 v37, 0xffff0000, v{x0}\nv_lshlrev_b32 v38, 16, v{x1}\nv_and_b32 v39, 0xffff0000, v{x1}")
            for r in range(4):
                a(f"v_add_f32 v{32+r}, v{32+r}, v{36+r}")
            t = 50 + 2*(k % 2)
            a(f"v_cvt_pk_bf16_f32 v{t}, v32, v33\nv_cvt_pk_bf16_f32 v{t+1}, v34, v35")
            a(f"buffer_store_dwordx2 v[{t}:{t+1}], v7, s[28:31], s18 offen offset:{i*64+q*16}")
    a.label(LEND)
    a("s_endpgm")
    return 160, lds
```

```python
import sys, struct
sys.path.insert(0, 'gen')
from common import *
import k0_prep, k1_gemm, k2_rec, k3_post
PROF = len(sys.argv) > 1 and sys.argv[1] == "prof"
hdr = open('cdna_kernels/%s.s.ref' % NAME).read().split("; Override")[0]
a = Asm()
g0 = k0_prep.gen_prep(a, "prep_kernel")
g1 = k1_gemm.gen_k1(a, "gemm1_kernel")
g2 = k2_rec.gen_rec(a, "rec_kernel", prof=PROF)
g3 = k3_post.gen_attn(a, "attn_kernel")
g4, l4 = k3_post.gen_ugemm(a, "ugemm_kernel")
g5 = k3_post.gen_ln2(a, "ln2_kernel")
g6, l6 = k3_post.gen_up(a, "up_kernel")
g7, l7 = k3_post.gen_down(a, "down_kernel")
launches = [("prep_kernel", g0, 0), ("gemm1_kernel", g1, 131072), ("rec_kernel", g2, 32768), ("attn_kernel", g3, 0),
            ("ugemm_kernel", g4, l4), ("ln2_kernel", g5, 0), ("up_kernel", g6, l6), ("down_kernel", g7, l7)]
out = hdr
for n, g, l in launches:
    out += f"; @launch kernel={n} grid=({g},1,1) block=(256,1,1) lds={l}\n"
out += '.amdgcn_target "amdgcn-amd-amdhsa--gfx950"\n.text\n' + a.text()
out += '.section .rodata,"a"\n'
out += descriptor("prep_kernel", 64) + descriptor("gemm1_kernel", 256, agpr=256) + descriptor("rec_kernel", 256, agpr=256)
out += descriptor("attn_kernel", 160) + descriptor("ugemm_kernel", 192, agpr=80) + descriptor("ln2_kernel", 64)
out += descriptor("up_kernel", 128, agpr=128) + descriptor("down_kernel", 128, agpr=32)
open('cdna_kernels/%s.s' % NAME, 'w').write(out)
import json
json.dump(WS, open('ws.json', 'w'))
print("scale const", hex(struct.unpack('<I', struct.pack('<f', 128**-0.5*1.4426950408889634))[0]), "1/640", hex(struct.unpack('<I', struct.pack('<f', 1/640))[0]), "1e-5", hex(struct.unpack('<I', struct.pack('<f', 1e-5))[0]), "-log2e", hex(struct.unpack('<I', struct.pack('<f', -1.4426950408889634))[0]))
print("bytes", len(out))
```
